```python
import torch

def _softmax(x, axis=-1):
    return torch.softmax(x, dim=axis)
def _gelu(x):
    return torch.nn.functional.gelu(x, approximate="tanh")
def _silu(x):
    return torch.nn.functional.silu(x)
def _sigmoid(x):
    return torch.sigmoid(x)
def _layernorm(x, axis=-1, eps=1e-5):
    m = x.mean(dim=axis, keepdim=True)
    v = x.var(dim=axis, keepdim=True, unbiased=False)
    return (x - m) / torch.sqrt(v + eps)
def _scatter_add(tgt, idx, src, axis=0):
    return tgt.clone().index_add_(axis, idx, src)
def _segment_sum(src, seg, n):
    out = torch.zeros((n,) + src.shape[1:], dtype=src.dtype)
    return out.index_add_(0, seg, src)
def _pad(x, pw):
    flat = tuple(v for pair in reversed(pw) for v in pair)
    return torch.nn.functional.pad(x, flat)

kernel_name = 'concat_heads__sliding_block__sliding_block__prompt'

def setup_inputs():

    _w = (lambda a: (lambda t: t.to(torch.bfloat16) if t.is_floating_point() else t)(torch.as_tensor(a)))
    def _A_setup():
        B, S, D = 1, 2048, 640
        return {
            "x": _w((lambda *s: torch.randn(*s, dtype=torch.bfloat16) * 0.2)(B, S, D)),
            "wqkv": _w((lambda *s: torch.randn(*s, dtype=torch.bfloat16) * 0.2)(D, 3 * D)),
            "wo": _w((lambda *s: torch.randn(*s, dtype=torch.bfloat16) * 0.05)(D, D)),
        }
    _A_in = _A_setup()

    def _B_setup():
        B, S, D = 1, 2048, 640
        return {
            "x": _w((lambda *s: torch.randn(*s, dtype=torch.bfloat16) * 0.2)(B, S, D)),
            "wqkv": _w((lambda *s: torch.randn(*s, dtype=torch.bfloat16) * 0.2)(D, 3 * D)),
            "wo": _w((lambda *s: torch.randn(*s, dtype=torch.bfloat16) * 0.05)(D, D)),
        }
    _B_in = _B_setup()

    return {
        "A_x": _A_in["x"],
        "A_wqkv": _A_in["wqkv"],
        "A_wo": _A_in["wo"],
        "B_x": _B_in["x"],
        "B_wqkv": _B_in["wqkv"],
        "B_wo": _B_in["wo"],
    }

def reference(A_x, A_wqkv, A_wo, B_x, B_wqkv, B_wo):
    def _A_ref(x, wqkv, wo):
        B, S, D = x.shape
        H = 32; Dh = D // H; W = 256
        qkv = (lambda x, *d: x.permute(*d))((x @ wqkv).reshape(B, S, 3, H, Dh), 2, 0, 3, 1, 4)
        q, k, v = qkv[0], qkv[1], qkv[2]
        scores = torch.einsum("bhqd,bhkd->bhqk", q, k) * (Dh ** -0.5)
        idx = torch.arange(S)
        mask = (idx[:, None] - idx[None, :] >= 0) & (idx[:, None] - idx[None, :] < W)
        scores = torch.where(mask[None, None], scores, -1e9)
        p = _softmax(scores, axis=-1)
        o = torch.einsum("bhqk,bhkd->bhqd", p, v)
        return (lambda x, *d: x.permute(*d))(o, 0, 2, 1, 3).reshape(B, S, D) @ wo

    def _B_ref(x, wqkv, wo):
        B, S, D = x.shape
        H = 32; Dh = D // H; W = 256
        qkv = (lambda x, *d: x.permute(*d))((x @ wqkv).reshape(B, S, 3, H, Dh), 2, 0, 3, 1, 4)
        q, k, v = qkv[0], qkv[1], qkv[2]
        scores = torch.einsum("bhqd,bhkd->bhqk", q, k) * (Dh ** -0.5)
        idx = torch.arange(S)
        mask = (idx[:, None] - idx[None, :] >= 0) & (idx[:, None] - idx[None, :] < W)
        scores = torch.where(mask[None, None], scores, -1e9)
        p = _softmax(scores, axis=-1)
        o = torch.einsum("bhqk,bhkd->bhqd", p, v)
        return (lambda x, *d: x.permute(*d))(o, 0, 2, 1, 3).reshape(B, S, D) @ wo

    a = _A_ref(A_x, A_wqkv, A_wo)
    b = _B_ref(B_x, B_wqkv, B_wo)
    return torch.concatenate([a, b], axis=-1)
```

```python
import sys
sys.path.insert(0, "mb")
from lib import *
src = []; names = []
def gen(name, nper, delta, st="sc1", ld="sc1", nwaves=4, sp=None):
    stores = "\n".join(f"buffer_store_dwordx4 v[{32+(i%8)*4}:{35+(i%8)*4}], v1, s[16:19], s21 offen offset:{(i%4)*1024} {st}" + ("\ns_add_u32 s21, s21, 4096" if i%4==3 else "") for i in range(nper))
    loads = "\n".join(f"buffer_load_dwordx4 v[{64+i*4}:{67+i*4}], v1, s[16:19], s24 offen offset:{(i%4)*1024} {ld}" + ("\ns_add_u32 s24, s24, 4096" if i%4==3 else "") for i in range(nper))
    POLL = "buffer_load_dword v7, v5, s[28:31], s37 offen sc1\ns_waitcnt vmcnt(0)\nv_readfirstlane_b32 s43, v7" if sp is None else f"s_load_dword s43, s[32:33], s37 {sp}\ns_waitcnt lgkmcnt(0)"
    k = f"t_{name}_kernel"
    names.append((k, nwaves))
    b = f"""
s_load_dwordx4 s[4:7], s[0:1], 0
s_load_dwordx4 s[32:35], s[0:1], 16
v_lshrrev_b32 v10, 6, v0
v_and_b32 v4, 63, v0
s_lshl_b32 s3, s2, 4
v_add_u32 v20, s3, v10
v_lshlrev_b32 v20, 4, v20
v_lshlrev_b32 v1, 4, v4
v_mul_u32_u24 v2, {nper*1024}, v10
v_add_u32 v1, v1, v2
""" + "\n".join(f"v_mov_b32 v{i}, v0" for i in range(32, 64)) + f"""
s_waitcnt lgkmcnt(0)
s_mov_b32 s8, s4
s_mov_b32 s9, s5
s_mov_b32 s10, 0x100000
s_mov_b32 s11, 0x20000
s_mov_b32 s16, s6
s_mov_b32 s17, s7
s_mov_b32 s18, {64<<20}
s_mov_b32 s19, 0x20000
s_mov_b32 s28, s32
s_mov_b32 s29, s33
s_mov_b32 s30, 0x100000
s_mov_b32 s31, 0x20000
s_lshl_b32 s21, s2, 17
s_sub_u32 s25, s2, {delta}
s_and_b32 s25, s25, 255
s_lshl_b32 s24, s25, 17
s_lshl_b32 s36, s2, 8
s_lshl_b32 s37, s25, 8
v_mov_b32 v5, 0
v_mov_b32 v6, 1
; rough global alignment of start: wait until realtime counter passes s34
L_{name}_al:
s_memrealtime s[38:39]
s_waitcnt lgkmcnt(0)
s_and_b32 s38, s38, 0xfff
s_cmp_lt_u32 s38, 0xf00
s_cbranch_scc1 L_{name}_al
L_{name}_al2:
s_memrealtime s[38:39]
s_waitcnt lgkmcnt(0)
s_and_b32 s38, s38, 0xfff
s_cmp_ge_u32 s38, 0x800
s_cbranch_scc1 L_{name}_al2
s_barrier
s_memtime s[12:13]
{stores}
s_waitcnt vmcnt(0)
s_memtime s[14:15]
s_barrier
v_cmp_eq_u32 vcc, 0, v0
s_and_saveexec_b64 s[40:41], vcc
s_cbranch_execz L_{name}_skip
buffer_store_dword v6, v5, s[28:31], s36 offen sc1
s_mov_b32 s42, 0
L_{name}_poll:
{POLL}
s_add_u32 s42, s42, 1
s_cmp_gt_u32 s42, 100000
s_cbranch_scc1 L_{name}_skip
s_cmp_eq_u32 s43, 0
s_cbranch_scc1 L_{name}_poll
L_{name}_skip:
s_mov_b64 exec, s[40:41]
s_barrier
s_memtime s[26:27]
{loads}
s_waitcnt vmcnt(0)
s_memtime s[44:45]
s_waitcnt lgkmcnt(0)
s_sub_u32 s14, s14, s12
s_sub_u32 s26, s26, s12
s_sub_u32 s44, s44, s12
v_mov_b32 v12, s14
v_mov_b32 v13, s26
v_mov_b32 v14, s44
v_mov_b32 v15, s42
buffer_store_dwordx4 v[12:15], v20, s[8:11], 0 offen
s_waitcnt vmcnt(0)
"""
    src.append(kernel_wrap(k, b, vgpr=168))
for nper in (1, 5):
    for delta in (8, 1):
        gen(f"n{nper}_d{delta}", nper, delta)
        gen(f"n{nper}_d{delta}_sglc", nper, delta, sp="glc")
hdr = "".join(f"; @launch kernel={k} grid=(1,1,1) block=(512,1,1) lds=0\n" for k,_ in names)
open("mb5.s", "w").write(hdr + HEADER + "\n".join(src))
build("mb5.s", 4)
open("mb5.names", "w").write("\n".join(f"{k} {n}" for k,n in names))
```
